```python
import torch

def _softmax(x, axis=-1):
    return torch.softmax(x, dim=axis)
def _gelu(x):
    return torch.nn.functional.gelu(x, approximate="tanh")
def _silu(x):
    return torch.nn.functional.silu(x)
def _sigmoid(x):
    return torch.sigmoid(x)
def _layernorm(x, axis=-1, eps=1e-5):
    m = x.mean(dim=axis, keepdim=True)
    v = x.var(dim=axis, keepdim=True, unbiased=False)
    return (x - m) / torch.sqrt(v + eps)
def _scatter_add(tgt, idx, src, axis=0):
    return tgt.clone().index_add_(axis, idx, src)
def _segment_sum(src, seg, n):
    out = torch.zeros((n,) + src.shape[1:], dtype=src.dtype)
    return out.index_add_(0, seg, src)
def _pad(x, pw):
    flat = tuple(v for pair in reversed(pw) for v in pair)
    return torch.nn.functional.pad(x, flat)

kernel_name = 'concat_heads__linear_attn_block__sliding_block__prompt'

def setup_inputs():

    _w = (lambda a: (lambda t: t.to(torch.bfloat16) if t.is_floating_point() else t)(torch.as_tensor(a)))
    def _A_setup():
        B, S, D = 1, 2048, 1024
        return {
            "x": _w((lambda *s: torch.randn(*s, dtype=torch.bfloat16) * 0.05)(B, S, D)),
            "wqkv": _w((lambda *s: torch.randn(*s, dtype=torch.bfloat16) * 1.6)(D, 3 * D)),
            "wo": _w((lambda *s: torch.randn(*s, dtype=torch.bfloat16) * 0.8)(D, D)),
        }
    _A_in = _A_setup()

    def _B_setup():
        B, S, D = 1, 2048, 1024
        return {
            "x": _w((lambda *s: torch.randn(*s, dtype=torch.bfloat16) * 0.2)(B, S, D)),
            "wqkv": _w((lambda *s: torch.randn(*s, dtype=torch.bfloat16) * 0.2)(D, 3 * D)),
            "wo": _w((lambda *s: torch.randn(*s, dtype=torch.bfloat16) * 0.05)(D, D)),
        }
    _B_in = _B_setup()

    return {
        "A_x": _A_in["x"],
        "A_wqkv": _A_in["wqkv"],
        "A_wo": _A_in["wo"],
        "B_x": _B_in["x"],
        "B_wqkv": _B_in["wqkv"],
        "B_wo": _B_in["wo"],
    }

def reference(A_x, A_wqkv, A_wo, B_x, B_wqkv, B_wo):
    def _A_ref(x, wqkv, wo):
        B, S, D = x.shape
        H = 32; Dh = D // H
        qkv = (lambda x, *d: x.permute(*d))((x @ wqkv).reshape(B, S, 3, H, Dh), 2, 0, 3, 1, 4)
        q, k, v = qkv[0], qkv[1], qkv[2]
        phi = lambda t: torch.where(t > 0, t + 1, torch.exp(t)) + 1e-6
        pq, pk = phi(q), phi(k)
        kv = torch.einsum("bhsd,bhse->bhde", pk, v)
        z = torch.einsum("bhsd->bhd", pk)
        num = torch.einsum("bhqd,bhde->bhqe", pq, kv)
        den = torch.einsum("bhqd,bhd->bhq", pq, z)[..., None] + 1e-6
        o = num / den
        return (lambda x, *d: x.permute(*d))(o, 0, 2, 1, 3).reshape(B, S, D) @ wo

    def _B_ref(x, wqkv, wo):
        B, S, D = x.shape
        H = 32; Dh = D // H; W = 256
        qkv = (lambda x, *d: x.permute(*d))((x @ wqkv).reshape(B, S, 3, H, Dh), 2, 0, 3, 1, 4)
        q, k, v = qkv[0], qkv[1], qkv[2]
        scores = torch.einsum("bhqd,bhkd->bhqk", q, k) * (Dh ** -0.5)
        idx = torch.arange(S)
        mask = (idx[:, None] - idx[None, :] >= 0) & (idx[:, None] - idx[None, :] < W)
        scores = torch.where(mask[None, None], scores, -1e9)
        p = _softmax(scores, axis=-1)
        o = torch.einsum("bhqk,bhkd->bhqd", p, v)
        return (lambda x, *d: x.permute(*d))(o, 0, 2, 1, 3).reshape(B, S, D) @ wo

    a = _A_ref(A_x, A_wqkv, A_wo)
    b = _B_ref(B_x, B_wqkv, B_wo)
    return torch.concatenate([a, b], axis=-1)
```

```python
import re

def v(i, n=1):
    return f"v{i}" if n == 1 else f"v[{i}:{i+n-1}]"
def s(i, n=1):
    return f"s{i}" if n == 1 else f"s[{i}:{i+n-1}]"

class Asm:
    def __init__(self):
        self.lines = []
    def __call__(self, txt):
        for l in txt.split("\n"):
            l = l.strip()
            if l:
                self.lines.append(l)
    def label(self, name):
        self.lines.append(name + ":")
    def comment(self, c):
        self.lines.append("; " + c)
    def text(self):
        out = []
        for l in self.lines:
            if l.endswith(":") or l.startswith(".") or l.startswith(";"):
                out.append(l)
            else:
                out.append("    " + l)
        return "\n".join(out) + "\n"

REG_RE = re.compile(r"^(-|abs\()?\s*([vsa])(?:(\d+)|\[(\d+):(\d+)\])\)?$")

def parse_reg(tok):
    tok = tok.strip()
    neg = tok.lstrip("-")
    if neg.startswith("abs(") and neg.endswith(")"):
        neg = neg[4:-1]
    if neg.startswith("|") and neg.endswith("|"):
        neg = neg[1:-1]
    m = re.match(r"^([vsa])(\d+)$", neg)
    if m:
        return [(m.group(1), int(m.group(2)))]
    m = re.match(r"^([vsa])\[(\d+):(\d+)\]$", neg)
    if m:
        return [(m.group(1), i) for i in range(int(m.group(2)), int(m.group(3)) + 1)]
    if neg == "vcc":
        return [("s", "vcc_lo"), ("s", "vcc_hi")]
    if neg in ("vcc_lo", "vcc_hi", "m0"):
        return [("s", neg)]
    if neg == "exec":
        return [("s", "exec_lo"), ("s", "exec_hi")]
    if neg in ("exec_lo", "exec_hi"):
        return [("s", neg)]
    return []

TRANS = ("v_exp_f32", "v_log_f32", "v_rcp_f32", "v_rsq_f32", "v_sqrt_f32", "v_sin_f32", "v_cos_f32", "v_rcp_iflag_f32")

class Ins:
    __slots__ = ("text", "op", "cls", "wr", "rd", "ops", "mods", "srcC", "srcAB", "nops", "lds_dma", "wide_store", "st_data")
    def __init__(self, text):
        self.text = text
        t = text.split(";")[0].strip()
        parts = t.split(None, 1)
        self.op = parts[0]
        rest = parts[1] if len(parts) > 1 else ""
        ops, depth, cur = [], 0, ""
        for ch in rest:
            if ch in "[(":
                depth += 1
            if ch in "])":
                depth -= 1
            if ch == "," and depth == 0:
                ops.append(cur.strip()); cur = ""
            else:
                cur += ch
        if cur.strip():
            ops.append(cur.strip())
        mods = []
        if ops:
            toks = ops[-1].split()
            if len(toks) > 1:
                ops[-1] = toks[0]; mods = toks[1:]
        self.ops = ops; self.mods = mods
        op = self.op
        base = re.sub(r"_(e32|e64|dpp|sdwa)$", "", op)
        self.wr = []; self.rd = []; self.srcC = []; self.srcAB = []; self.nops = 1
        self.lds_dma = False; self.wide_store = False; self.st_data = []
        R = [parse_reg(o) for o in ops]
        if op == "s_nop":
            self.cls = "nop"; self.nops = int(ops[0], 0) + 1
        elif op.startswith("v_mfma"):
            self.cls = "mfma"
            self.wr = R[0]; self.srcAB = R[1] + R[2]; self.srcC = R[3]
            self.rd = self.srcAB + self.srcC
        elif op.startswith("v_"):
            self.cls = "trans" if base in TRANS else "valu"
            if base.startswith("v_cmp"):
                self.wr = R[0]; self.rd = sum(R[1:], [])
                if base.startswith("v_cmpx"):
                    self.wr = self.wr + parse_reg("exec")
            elif base in ("v_add_co_u32", "v_sub_co_u32", "v_addc_co_u32", "v_subb_co_u32", "v_mad_u64_u32"):
                self.wr = R[0] + R[1]; self.rd = sum(R[2:], [])
            elif base in ("v_permlane32_swap_b32", "v_permlane16_swap_b32", "v_swap_b32"):
                self.wr = R[0] + R[1]; self.rd = R[0] + R[1]
            elif base in ("v_fmac_f32", "v_pk_fmac_f16", "v_dot2c_f32_bf16", "v_writelane_b32", "v_mac_f32"):
                self.wr = R[0]; self.rd = sum(R, [])
            elif base == "v_cndmask_b32":
                self.wr = R[0]; self.rd = sum(R[1:], [])
                if len(ops) == 3:
                    self.rd += parse_reg("vcc")
            else:
                self.wr = R[0]; self.rd = sum(R[1:], [])
        elif op.startswith("ds_"):
            self.cls = "ds"
            if op.startswith("ds_read") or op.startswith("ds_bpermute") or op.startswith("ds_permute") or op.startswith("ds_swizzle") or "_rtn" in op:
                self.wr = R[0]; self.rd = sum(R[1:], [])
            else:
                self.rd = sum(R, [])
        elif op.startswith("buffer_") or op.startswith("global_") or op.startswith("flat_"):
            self.cls = "vmem"
            allm = mods
            if op in ("buffer_inv", "buffer_wbl2"):
                pass
            elif "lds" in allm or "_lds_" in op:
                self.lds_dma = True
                self.rd = sum(R, []) + [("s", "m0")]
            elif "_load" in op:
                self.wr = R[0]; self.rd = sum(R[1:], [])
            elif "_store" in op:
                self.rd = sum(R, [])
                data = R[0] if op.startswith("buffer_") else R[1]
                self.st_data = data
                self.wide_store = op.endswith("x3") or op.endswith("x4")
            elif "_atomic" in op:
                self.rd = sum(R, [])
                if "sc0" in allm:
                    self.wr = R[0]
            else:
                raise ValueError("unknown vmem " + text)
        elif op.startswith("s_"):
            self.cls = "salu"
            if op.startswith("s_load") or op.startswith("s_buffer_load"):
                self.cls = "smem"; self.wr = R[0]; self.rd = sum(R[1:], [])
            elif op.startswith("s_cmp") or op.startswith("s_cbranch") or op in ("s_branch", "s_waitcnt", "s_barrier", "s_endpgm", "s_setprio", "s_sleep", "s_bitcmp1_b32", "s_bitcmp0_b32"):
                self.rd = sum(R, [])
            elif op in ("s_memtime", "s_memrealtime"):
                self.cls = "smem"; self.wr = R[0]
            elif op.endswith("saveexec_b64"):
                self.wr = R[0] + parse_reg("exec"); self.rd = sum(R[1:], []) + parse_reg("exec")
            elif op.startswith("s_getreg"):
                self.wr = R[0]
            else:
                self.wr = R[0] if R else []; self.rd = sum(R[1:], [])
        else:
            raise ValueError("unknown instruction: " + text)

def mfma_passes(op):
    if "32x32x16" in op or "32x32x8_" in op:
        return 8
    if "16x16x32" in op or "16x16x16" in op:
        return 4
    raise ValueError(op)

def is_valu(i):
    return i.cls in ("valu", "trans")

def vregs(lst):
    return set(r for r in lst if r[0] in "va")
def sregs(lst):
    return set(r for r in lst if r[0] == "s")

def required_gap(p, c):
    need = 0
    pw_v = vregs(p.wr); pw_s = sregs(p.wr)
    if p.cls == "mfma":
        n = mfma_passes(p.op)
        D = pw_v
        tbl_valu = {4: 8, 8: 12}[n]
        if c.cls == "mfma":
            cC = vregs(c.srcC)
            if cC & D:
                if cC == D and mfma_passes(c.op) == n and list(c.srcC)[0] == list(p.wr)[0]:
                    pass
                else:
                    need = max(need, {4: 6, 8: 10}[n])
            if vregs(c.srcAB) & D:
                need = max(need, tbl_valu)
            if (vregs(c.wr) & D) and not (cC & D):
                need = max(need, tbl_valu)
        else:
            if (vregs(c.rd) | vregs(c.wr)) & D:
                need = max(need, tbl_valu)
        if is_valu(c) and (vregs(c.wr) & vregs(p.srcC)):
            need = max(need, {4: 3, 8: 7}[n])
        if c.cls in ("ds", "vmem") and (vregs(c.wr) & vregs(p.srcC)):
            need = max(need, {4: 3, 8: 7}[n])
    if is_valu(p):
        if c.cls == "mfma" and (pw_v & vregs(c.rd)):
            need = max(need, 2)
        if c.cls == "mfma" and (("s", "exec_lo") in pw_s):
            need = max(need, 4)
        if c.cls == "vmem" and (pw_s & sregs(c.rd)):
            need = max(need, 5)
        if is_valu(c):
            cb = re.sub(r"_(e32|e64|dpp|sdwa)$", "", c.op)
            if pw_s & sregs(c.rd):
                need = max(need, 2)
                if cb in ("v_readlane_b32", "v_writelane_b32"):
                    need = max(need, 4)
            if cb in ("v_readlane_b32", "v_readfirstlane_b32") and (pw_v & vregs(c.rd)):
                need = max(need, 1)
            if cb.startswith("v_permlane") and (pw_v & vregs(c.rd)):
                need = max(need, 2)
            if ("dpp" in c.op or any(m.startswith("row_") or m.startswith("quad_perm") for m in c.mods)) and (pw_v & vregs(c.rd)):
                need = max(need, 2)
            if p.cls == "trans" and (pw_v & vregs(c.rd)):
                need = max(need, 1)
            if ("s", "exec_lo") in pw_s and cb in ("v_readlane_b32", "v_readfirstlane_b32", "v_writelane_b32") :
                need = max(need, 4)
            if ("s", "exec_lo") in pw_s and cb.startswith("v_permlane"):
                need = max(need, 4)
        if p.cls == "trans" and c.cls in ("ds", "vmem") and (pw_v & vregs(c.rd)):
            need = max(need, 1)
        if c.cls in ("salu", "smem") and (pw_s & sregs(c.rd)):
            need = max(need, 1)
    if p.cls == "salu":
        if ("s", "m0") in pw_s and c.lds_dma:
            need = max(need, 1)
    if p.cls == "vmem" and p.wide_store:
        if (vregs(p.st_data) & vregs(c.wr)):
            need = max(need, 2 if is_valu(c) else 1)
    return need

def fix_hazards(lines, verbose=False):
    out = []
    LOOK = 24
    def dist_needed(prev_list, c):
        need = 0; gap = 0
        for p in reversed(prev_list[-LOOK:]):
            r = required_gap(p, c)
            if r > gap:
                need = max(need, r - gap)
            gap += p.nops
            if gap >= 20:
                break
        return need
    hist = []
    inserted = 0
    labels = {}
    seq = []
    for l in lines:
        if l.endswith(":") :
            labels[l[:-1]] = len(seq)
            out.append(l); continue
        if l.startswith(".") or l.startswith(";"):
            out.append(l); continue
        ins = Ins(l)
        n = dist_needed(hist, ins)
        while n > 0:
            k = min(n, 16)
            nop = Ins(f"s_nop {k-1}")
            out.append(nop.text + "  ; hazard pad"); hist.append(nop); seq.append(nop)
            n -= k; inserted += 1
        out.append(l); hist.append(ins); seq.append(ins)
        if ins.op == "s_endpgm" or ins.op == "s_branch":
            pass
    problems = []
    for idx, ins in enumerate(seq):
        if ins.op.startswith("s_cbranch") or ins.op == "s_branch":
            tgt = ins.ops[0]
            if tgt not in labels:
                continue
            t = labels[tgt]
            h = list(seq[max(0, idx - LOOK):idx + 1])
            gap = 0
            for c in seq[t:t + LOOK]:
                n = dist_needed(h, c)
                if n > 0:
                    problems.append((ins.text, c.text, n))
                h.append(c)
                gap += c.nops
                if gap >= 20:
                    break
    if problems:
        for p in problems:
            print("HAZARD across branch:", p)
        raise RuntimeError("cross-branch hazards")
    if verbose:
        print(f"; inserted {inserted} hazard pads")
    return out
```

```python
from asmlib import *
from g1 import *

WS_BKV  = 0
WS_BQ   = 8 << 20
WS_AQ   = 12 << 20
WS_AKV  = 16 << 20
WS_AZ   = 17 << 20
WS_O    = 18 << 20
WS_STAMP = 26 << 20
WS_END  = 27 << 20

S_STAMP = 60
def mk_stamp(a, opt):
    def stamp(idx):
        if not opt.get("stamp"): return
        a(f"s_memrealtime s[{S_STAMP+2*idx}:{S_STAMP+2*idx+1}]")
        if idx == 0:
            a(f"s_memtime s[{S_STAMP+20}:{S_STAMP+21}]")
    return stamp

def stamp_flush(a, opt, nst, wgreg="s2"):
    if not opt.get("stamp"): return
    a(f"s_memtime s[{S_STAMP+22}:{S_STAMP+23}]")
    a("s_waitcnt vmcnt(0) lgkmcnt(0)")
    a(f"s_lshl_b32 s{S_T0}, {wgreg}, 3")
    a(f"s_add_u32 s{S_T0}, s{S_T0}, s{S_W}")
    a(f"s_lshl_b32 s{S_T0}, s{S_T0}, 6")
    a(f"s_add_u32 s{S_T0}, s{S_T0}, {WS_STAMP}")
    a(f"v_mov_b32 v1, 0")
    for i in range(nst):
        a(f"v_mov_b32 v2, s{S_STAMP+2*i}")
        a(f"buffer_store_dword v2, v1, s[{S_WSSRD}:{S_WSSRD+3}], s{S_T0} offen offset:{4*i}")
    a(f"s_sub_u32 s{S_T1}, s{S_STAMP+22}, s{S_STAMP+20}")
    a(f"v_mov_b32 v2, s{S_T1}")
    a(f"buffer_store_dword v2, v1, s[{S_WSSRD}:{S_WSSRD+3}], s{S_T0} offen offset:60")
    a("s_waitcnt vmcnt(0)")

def descriptor(name, vgpr, sgpr=96):
    return f""".amdhsa_kernel {name}
  .amdhsa_next_free_vgpr {vgpr}
  .amdhsa_next_free_sgpr {sgpr}
  .amdhsa_accum_offset {(vgpr+3)//4*4}
  .amdhsa_group_segment_fixed_size 0
  .amdhsa_kernarg_size 72
  .amdhsa_user_sgpr_count 2
  .amdhsa_user_sgpr_kernarg_segment_ptr 1
  .amdhsa_system_sgpr_workgroup_id_x 1
  .amdhsa_float_denorm_mode_32 3
  .amdhsa_float_denorm_mode_16_64 3
.end_amdhsa_kernel
"""

def assemble_file(kernels, path, header=""):
    out = [header]
    for (name, a, grid, block, lds, vgpr) in kernels:
        out.append(f"; @launch kernel={name} grid=({grid},1,1) block=({block},1,1) lds={lds}\n")
    out.append('.amdgcn_target "amdgcn-amd-amdhsa--gfx950"\n.text\n')
    seen = set()
    for (name, a, grid, block, lds, vgpr) in kernels:
        if name in seen: continue
        seen.add(name)
        out.append(f".globl {name}\n.p2align 8\n.type {name},@function\n")
        lines = fix_hazards(a.lines, verbose=False)
        txt = []
        for l in lines:
            l2 = re.sub(r"\bL_(\w+)", lambda m: f"L_{name[:6]}_{m.group(1)}", l)
            if l2.endswith(":") or l2.startswith(".") or l2.startswith(";"):
                txt.append(l2)
            else:
                txt.append("    " + l2)
        out.append("\n".join(txt) + "\n")
    out.append('.section .rodata,"a"\n')
    seen = set()
    for (name, a, grid, block, lds, vgpr) in kernels:
        if name in seen: continue
        seen.add(name)
        out.append(".p2align 6\n" + descriptor(name, vgpr))
    open(path, "w").write("".join(out))
```

```python
from asmlib import *
import struct
def f2u(x):
    return struct.unpack("<I", struct.pack("<f", x))[0]

LOG2E = 1.4426950408889634
QSCALE = (32 ** -0.5) * LOG2E

XSLOT = 32768
WSLOT = 24576
WBASE = 3 * XSLOT
LDS_G1 = WBASE + 2 * WSLOT

ACC = 0
XF = 96
WF = 128
VXA = 176
VWA = 178
VDX = 180
VDW = 184
VLANE = 187
VT = 188

S_XSRD = 4; S_WSRD = 8; S_WSSRD = 12
S_W = 16; S_P = 17; S_R = 18; S_HP = 19
S_XSO = 20; S_WSO = 21; S_XCUR = 22; S_WCUR = 23; S_DX = 24; S_DW = 25; S_KK = 26
S_XM0B = 27; S_WM0B = 28; S_T0 = 29; S_T1 = 30; S_T2 = 31; S_H = 32; S_SB = 33
S_T3 = 34; S_T4 = 35

def acc(part, u, st): return ACC + 4 * (part * 8 + u * 4 + st)
def xf(buf, st): return XF + buf * 16 + st * 4
def wf(buf, part, u): return WF + buf * 24 + (part * 2 + u) * 4

def decode_wg(a):
    a(f"""
    s_cmp_ge_u32 s2, 256
    s_cbranch_scc1 L_exit
    s_and_b32 s{S_T0}, s2, 7
    s_lshr_b32 s{S_T1}, s2, 3
    s_lshr_b32 s{S_P}, s{S_T0}, 2
    s_bfe_u32 s{S_R}, s{S_T0}, 0x10001
    s_lshl_b32 s{S_R}, s{S_R}, 2
    s_and_b32 s{S_T2}, s{S_T1}, 3
    s_add_u32 s{S_R}, s{S_R}, s{S_T2}
    s_and_b32 s{S_HP}, s{S_T0}, 1
    s_lshl_b32 s{S_HP}, s{S_HP}, 3
    s_lshr_b32 s{S_T1}, s{S_T1}, 2
    s_add_u32 s{S_HP}, s{S_HP}, s{S_T1}
    """)

def xdma_list(m0expr=None):
    return [f"buffer_load_dwordx4 v{VDX+j}, s[{S_XSRD}:{S_XSRD+3}], s{S_XSO} offen offset:{j*1024} lds" for j in range(4)]
def wdma_list():
    return [f"buffer_load_dwordx4 v{VDW+g}, s[{S_WSRD}:{S_WSRD+3}], s{S_WSO} offen offset:{g*1024} lds" for g in range(3)]

def g1_setup(a, ws_end):
    T = VT
    a(f"""
    s_mul_i32 s{S_T0}, s{S_P}, 24
    s_add_u32 s34, s0, s{S_T0}
    s_addc_u32 s35, s1, 0
    s_load_dwordx4 s[36:39], s[34:35], 0
    s_load_dwordx2 s[40:41], s[0:1], 64
    v_lshrrev_b32 v{T}, 6, v0
    v_and_b32 v{VLANE}, 63, v0
    v_readfirstlane_b32 s{S_W}, v{T}
    v_lshrrev_b32 v{T}, 3, v{VLANE}
    v_and_b32 v{T+1}, 7, v{VLANE}
    v_lshrrev_b32 v{T+2}, 4, v{VLANE}
    s_lshr_b32 s{S_H}, s{S_W}, 2
    s_and_b32 s{S_SB}, s{S_W}, 3
    s_lshl_b32 s{S_T0}, s{S_R}, 8
    s_lshl_b32 s{S_T1}, s{S_W}, 5
    s_add_u32 s{S_T0}, s{S_T0}, s{S_T1}
    v_add_u32 v{T+3}, s{S_T0}, v{T}
    v_lshlrev_b32 v{T+3}, 11, v{T+3}
    v_xor_b32 v{T+4}, v{T+1}, v{T+2}
    v_xor_b32 v{T+5}, 4, v{T+4}
    v_lshl_add_u32 v{VDX}, v{T+4}, 4, v{T+3}
    v_lshl_add_u32 v{VDX+1}, v{T+5}, 4, v{T+3}
    v_add_u32 v{VDX+2}, {16*2048 - 2*1024}, v{VDX}
    v_add_u32 v{VDX+3}, {24*2048 - 3*1024}, v{VDX+1}
    v_add_u32 v{VDX+1}, {8*2048 - 1024}, v{VDX+1}
    """)
    a(f"""
    s_lshl_b32 s{S_T0}, s{S_W}, 3
    v_add_u32 v{T+3}, s{S_T0}, v{T}
    v_mul_u32_u24 v{T+3}, 6144, v{T+3}
    v_and_b32 v{T+4}, 1, v{T+2}
    s_and_b32 s{S_T1}, s{S_W}, 1
    s_lshl_b32 s{S_T1}, s{S_T1}, 1
    v_or_b32 v{T+4}, s{S_T1}, v{T+4}
    v_lshlrev_b32 v{T+4}, 1, v{T+4}
    v_xor_b32 v{T+4}, v{T+1}, v{T+4}
    v_lshl_add_u32 v{T+3}, v{T+4}, 4, v{T+3}
    s_lshl_b32 s{S_T0}, s{S_HP}, 7
    v_add_u32 v{VDW}, s{S_T0}, v{T+3}
    v_add_u32 v{VDW+1}, 1024, v{VDW}
    v_add_u32 v{VDW+2}, 2048, v{VDW}
    s_lshl_b32 s{S_XM0B}, s{S_W}, 12
    s_mul_i32 s{S_WM0B}, s{S_W}, 3072
    s_add_u32 s{S_WM0B}, s{S_WM0B}, {WBASE}
    s_waitcnt lgkmcnt(0)
    s_mov_b32 s{S_XSRD}, s36
    s_mov_b32 s{S_XSRD+1}, s37
    s_mov_b32 s{S_XSRD+2}, {2048*1024*2}
    s_mov_b32 s{S_XSRD+3}, 0x00020000
    s_mov_b32 s{S_WSRD}, s38
    s_mov_b32 s{S_WSRD+1}, s39
    s_mov_b32 s{S_WSRD+2}, {1024*3072*2}
    s_mov_b32 s{S_WSRD+3}, 0x00020000
    """)
    def xdma(stage, slot):
        a(f"s_add_u32 m0, s{S_XM0B}, {slot*XSLOT}")
        a(f"s_mov_b32 s{S_XSO}, {stage*128}")
        for l in xdma_list(): a(l)
    def wdma(stage, slot):
        a(f"s_add_u32 m0, s{S_WM0B}, {slot*WSLOT}")
        a(f"s_mov_b32 s{S_WSO}, {stage*64*6144}")
        for l in wdma_list(): a(l)
    xdma(0, 0); wdma(0, 0); xdma(1, 1); wdma(1, 1); xdma(2, 2)
    a(f"""
    s_mov_b32 s{S_WSSRD}, s40
    s_mov_b32 s{S_WSSRD+1}, s41
    s_mov_b32 s{S_WSSRD+2}, {ws_end}
    s_mov_b32 s{S_WSSRD+3}, 0x00020000
    s_mov_b32 s{S_XSO}, {3*128}
    s_mov_b32 s{S_WSO}, {2*64*6144}
    s_mov_b32 s{S_XCUR}, 0
    s_mov_b32 s{S_WCUR}, 0
    s_mov_b32 s{S_KK}, 0
    """)
    a(f"""
    v_and_b32 v{T}, 15, v{VLANE}
    v_lshrrev_b32 v{T+1}, 4, v{VLANE}
    s_lshl_b32 s{S_T0}, s{S_SB}, 6
    v_add_u32 v{T+2}, s{S_T0}, v{T}
    v_lshlrev_b32 v{T+2}, 7, v{T+2}
    v_lshrrev_b32 v{T+3}, 1, v{T}
    v_xor_b32 v{T+3}, v{T+3}, v{T+1}
    v_lshl_add_u32 v{VXA}, v{T+3}, 4, v{T+2}
    v_xor_b32 v{T+3}, 4, v{T+3}
    v_lshl_add_u32 v{VXA+1}, v{T+3}, 4, v{T+2}
    """)
    a(f"""
    v_mul_u32_u24 v{T+2}, 3072, v{T+1}
    v_bfe_u32 v{T+3}, v{VLANE}, 2, 2
    v_lshl_add_u32 v{T+2}, v{T+3}, 7, v{T+2}
    v_and_b32 v{T+4}, 3, v{VLANE}
    v_lshl_add_u32 v{T+2}, v{T+4}, 3, v{T+2}
    v_add_u32 v{T+2}, {WBASE}, v{T+2}
    v_lshrrev_b32 v{T+3}, 1, v{T+3}
    v_and_b32 v{T+4}, 1, v{T+1}
    v_lshl_or_b32 v{T+3}, v{T+4}, 1, v{T+3}
    s_lshl_b32 s{S_T0}, s{S_H}, 1
    v_xor_b32 v{T+3}, s{S_T0}, v{T+3}
    v_lshl_add_u32 v{VWA}, v{T+3}, 5, v{T+2}
    v_xor_b32 v{T+3}, 1, v{T+3}
    v_lshl_add_u32 v{VWA+1}, v{T+3}, 5, v{T+2}
    """)
    for i in range(96):
        a(f"v_mov_b32 v{ACC+i}, 0")

def frag_reads(buf, ks):
    r = []
    def xr(st): return f"ds_read_b128 v[{xf(buf,st)}:{xf(buf,st)+3}], v{VXA+ks} offset:{st*2048}"
    def wr(part, u):
        d = wf(buf, part, u)
        return [f"ds_read_b64_tr_b16 v[{d+2*aa}:{d+2*aa+1}], v{VWA+u} offset:{ks*12288 + part*1024 + aa*512}" for aa in range(2)]
    r += wr(0, 0); r.append(xr(0)); r.append(xr(1)); r.append(xr(2)); r.append(xr(3))
    r += wr(0, 1); r += wr(1, 0); r += wr(1, 1); r += wr(2, 0); r += wr(2, 1)
    return r

def mm(acc_, A, B):
    return f"v_mfma_f32_16x16x32_bf16 v[{acc_}:{acc_+3}], v[{A}:{A+3}], v[{B}:{B+3}], v[{acc_}:{acc_+3}]"

def mfmas(buf, prob):
    m = []
    tparts = [0] if prob == 0 else [0, 1]
    for part in tparts:
        for u in range(2):
            for st in range(4):
                m.append(mm(acc(part, u, st), wf(buf, part, u), xf(buf, st)))
    nparts = [1, 2] if prob == 0 else [2]
    for st in range(4):
        for part in nparts:
            for u in range(2):
                m.append(mm(acc(part, u, st), xf(buf, st), wf(buf, part, u)))
    return m

def interleave(mf, fill, a, per=1, start=0):
    fi = 0
    for k, m in enumerate(mf):
        a(m)
        if k >= start:
            n = per
            while n > 0 and fi < len(fill):
                a(fill[fi]); fi += 1; n -= 1
    while fi < len(fill):
        a(fill[fi]); fi += 1

def g1_iter(a, prob, do_w, do_x, vm, last, opt):
    per = opt.get("per", 1)
    nodma = opt.get("nodma"); nobar = opt.get("nobar"); nolds = opt.get("nolds")
    fill = [] if nolds else frag_reads(1, 1)
    fill += [f"s_add_u32 s{S_T0}, s{S_XCUR}, {XSLOT}",
             f"s_cmp_eq_u32 s{S_T0}, {3*XSLOT}",
             f"s_cselect_b32 s{S_T0}, 0, s{S_T0}",
             f"s_sub_u32 s{S_DX}, s{S_T0}, s{S_XCUR}",
             f"s_lshl_b32 s{S_T1}, s{S_WCUR}, 1",
             f"s_sub_u32 s{S_DW}, {WSLOT}, s{S_T1}",
             f"v_add_u32 v{VXA}, s{S_DX}, v{VXA}"]
    interleave(mfmas(0, prob), fill, a, per=per)
    a(f"v_add_u32 v{VXA+1}, s{S_DX}, v{VXA+1}")
    a(f"v_add_u32 v{VWA}, s{S_DW}, v{VWA}")
    a(f"v_add_u32 v{VWA+1}, s{S_DW}, v{VWA+1}")
    if last or nodma:
        a("s_waitcnt lgkmcnt(0)")
    else:
        a(f"s_waitcnt vmcnt({vm}) lgkmcnt(0)")
    if not last and not nobar:
        a("s_barrier")
    fill = []
    if not last and not nolds:
        fill += frag_reads(0, 0)
    dma = []
    if do_w and not nodma:
        dma.append(f"s_add_u32 m0, s{S_WM0B}, s{S_WCUR}")
        dma += wdma_list()
        dma.append(f"s_add_u32 s{S_WSO}, s{S_WSO}, {64*6144}")
    if do_x and not nodma:
        dma.append(f"s_add_u32 m0, s{S_XM0B}, s{S_XCUR}")
        dma += xdma_list()
        dma.append(f"s_add_u32 s{S_XSO}, s{S_XSO}, 128")
    book = [f"s_add_u32 s{S_XCUR}, s{S_XCUR}, s{S_DX}", f"s_add_u32 s{S_WCUR}, s{S_WCUR}, s{S_DW}"]
    if opt.get("dmafirst"):
        fill = dma + fill + book
    else:
        fill = fill + dma + book
    interleave(mfmas(1, prob), fill, a, per=opt.get("per2", 2))
    if not last:
        a("s_waitcnt lgkmcnt(0)")

def g1_main(a, prob, opt, stamp=None):
    pre = "AB"[prob]
    a("s_waitcnt vmcnt(11)")
    a("s_barrier")
    if stamp: stamp(1)
    for f in frag_reads(0, 0):
        a(f)
    a("s_waitcnt lgkmcnt(0)")
    a.label(f"L_g1_{pre}")
    g1_iter(a, prob, True, True, 4, False, opt)
    a(f"s_add_u32 s{S_KK}, s{S_KK}, 1")
    a(f"s_cmp_lt_u32 s{S_KK}, 13")
    a(f"s_cbranch_scc1 L_g1_{pre}")
    g1_iter(a, prob, True, False, 4, False, opt)
    g1_iter(a, prob, False, False, 0, False, opt)
    g1_iter(a, prob, False, False, 0, True, opt)
```

```python
from common import *

def cvt_pair(a, dst, t0, t1):
    a(f"v_cvt_pk_bf16_f32 v{dst}, v{t0}, v{t0+1}")
    a(f"v_cvt_pk_bf16_f32 v{dst+1}, v{t0+2}, v{t0+3}")
    a(f"v_cvt_pk_bf16_f32 v{dst+2}, v{t1}, v{t1+1}")
    a(f"v_cvt_pk_bf16_f32 v{dst+3}, v{t1+2}, v{t1+3}")

PK = 96
def epi_B_pack(a):
    a(f"s_mov_b32 s{S_T0}, {f2u(QSCALE):#x}")
    for i in range(32):
        a(f"v_mul_f32 v{ACC+i}, s{S_T0}, v{ACC+i}")
    for st in range(4):
        cvt_pair(a, PK + 4 * st, acc(0, 0, st), acc(0, 1, st))
        cvt_pair(a, PK + 16 + 4 * st, acc(1, 0, st), acc(1, 1, st))
    for m in range(2):
        for u in range(2):
            cvt_pair(a, PK + 32 + 4 * (2 * m + u), acc(2, u, 2 * m), acc(2, u, 2 * m + 1))

def epi_B(a):
    epi_B_pack(a)
    a(f"""
    s_lshl_b32 s{S_T0}, s{S_HP}, 1
    s_add_u32 s{S_T0}, s{S_T0}, s{S_H}
    s_lshl_b32 s{S_T1}, s{S_T0}, 6
    s_lshl_b32 s{S_T2}, s{S_R}, 3
    s_add_u32 s{S_T1}, s{S_T1}, s{S_T2}
    s_lshl_b32 s{S_T2}, s{S_SB}, 1
    s_add_u32 s{S_T1}, s{S_T1}, s{S_T2}
    s_lshl_b32 s{S_T1}, s{S_T1}, 12
    s_add_u32 s{S_T1}, s{S_T1}, {WS_BKV}
    s_lshl_b32 s{S_T0}, s{S_T0}, 7
    s_lshl_b32 s{S_T2}, s{S_R}, 4
    s_add_u32 s{S_T0}, s{S_T0}, s{S_T2}
    s_lshl_b32 s{S_T2}, s{S_SB}, 2
    s_add_u32 s{S_T0}, s{S_T0}, s{S_T2}
    s_lshl_b32 s{S_T0}, s{S_T0}, 10
    s_add_u32 s{S_T0}, s{S_T0}, {WS_BQ}
    v_lshlrev_b32 v{VT}, 4, v{VLANE}
    """)
    for st in range(4):
        src = PK + 4 * st
        a(f"buffer_store_dwordx4 v[{src}:{src+3}], v{VT}, s[{S_WSSRD}:{S_WSSRD+3}], s{S_T0} offen offset:{st*1024}")
    for m in range(2):
        if m == 1:
            a(f"s_add_u32 s{S_T1}, s{S_T1}, 4096")
        for f in range(2):
            src = PK + 16 + 4 * (2 * m + f)
            a(f"buffer_store_dwordx4 v[{src}:{src+3}], v{VT}, s[{S_WSSRD}:{S_WSSRD+3}], s{S_T1} offen offset:{f*1024}")
        for u in range(2):
            src = PK + 32 + 4 * (2 * m + u)
            a(f"buffer_store_dwordx4 v[{src}:{src+3}], v{VT}, s[{S_WSSRD}:{S_WSSRD+3}], s{S_T1} offen offset:{2048+u*1024}")

def phi(a, base, n, tmp):
    a(f"s_mov_b32 s{S_T0}, {f2u(LOG2E):#x}")
    a(f"s_mov_b32 s{S_T1}, {f2u(1e-6):#x}")
    CH = 8
    for c in range(0, n, CH):
        for i in range(CH):
            a(f"v_mul_f32 v{tmp+i}, s{S_T0}, v{base+c+i}")
        for i in range(CH):
            a(f"v_exp_f32_e64 v{tmp+i}, v{tmp+i} clamp")
        for i in range(CH):
            a(f"v_max_f32 v{base+c+i}, 0, v{base+c+i}")
        for i in range(CH):
            a(f"v_add_f32 v{tmp+i}, s{S_T1}, v{tmp+i}")
        for i in range(CH):
            a(f"v_add_f32 v{base+c+i}, v{base+c+i}, v{tmp+i}")

def epi_A_local(a):
    TMP = VT
    phi(a, ACC, 64, TMP)
    for st in range(4):
        cvt_pair(a, PK + 4 * st, acc(0, 0, st), acc(0, 1, st))
    for m in range(2):
        for u in range(2):
            cvt_pair(a, PK + 16 + 4 * (2 * m + u), acc(1, u, 2 * m), acc(1, u, 2 * m + 1))
            cvt_pair(a, PK + 32 + 4 * (2 * m + u), acc(2, u, 2 * m), acc(2, u, 2 * m + 1))
    ONES = TMP + 8
    for i in range(4):
        a(f"v_mov_b32 v{ONES+i}, 0x3f803f80")
    for i in range(24):
        a(f"v_mov_b32 v{i}, 0")
    for m in range(2):
        for u in range(2):
            A = PK + 16 + 4 * (2 * m + u)
            for u2 in range(2):
                a(mm(4 * (2 * u + u2), A, PK + 32 + 4 * (2 * m + u2)))
            a(mm(16 + 4 * u, A, ONES))

def epi_A(a):
    epi_A_local(a)
    a(f"""
    s_lshl_b32 s{S_T0}, s{S_HP}, 1
    s_add_u32 s{S_T0}, s{S_T0}, s{S_H}
    s_lshl_b32 s{S_T2}, s{S_T0}, 7
    s_lshl_b32 s{S_T1}, s{S_R}, 4
    s_add_u32 s{S_T2}, s{S_T2}, s{S_T1}
    s_lshl_b32 s{S_T1}, s{S_SB}, 2
    s_add_u32 s{S_T2}, s{S_T2}, s{S_T1}
    s_lshl_b32 s{S_T2}, s{S_T2}, 10
    s_add_u32 s{S_T2}, s{S_T2}, {WS_AQ}
    v_lshlrev_b32 v{VT}, 4, v{VLANE}
    """)
    for st in range(4):
        src = PK + 4 * st
        a(f"buffer_store_dwordx4 v[{src}:{src+3}], v{VT}, s[{S_WSSRD}:{S_WSSRD+3}], s{S_T2} offen offset:{st*1024}")
    a("s_barrier")
    a(f"s_lshl_b32 s{S_T1}, s{S_W}, 13")
    a(f"v_add_u32 v{VT+1}, s{S_T1}, v{VT}")
    for q in range(6):
        a(f"ds_write_b128 v{VT+1}, v[{4*q}:{4*q+3}] offset:{q*1024}")
    a("s_waitcnt lgkmcnt(0)")
    a("s_barrier")
    a(f"""
    s_lshl_b32 s{S_T1}, s{S_H}, 15
    s_lshl_b32 s34, s{S_SB}, 10
    s_add_u32 s{S_T1}, s{S_T1}, s34
    v_add_u32 v{VT+1}, s{S_T1}, v{VT}
    s_and_b32 s35, s{S_SB}, 1
    s_lshl_b32 s35, s35, 10
    s_lshl_b32 s{S_T1}, s{S_H}, 15
    s_add_u32 s{S_T1}, s{S_T1}, s35
    v_add_u32 v{VT+2}, s{S_T1}, v{VT}
    """)
    for ww in range(4):
        a(f"ds_read_b128 v[{32+ww*8}:{32+ww*8+3}], v{VT+1} offset:{ww*8192}")
        a(f"ds_read_b128 v[{32+ww*8+4}:{32+ww*8+7}], v{VT+2} offset:{ww*8192+4096}")
    a("s_waitcnt lgkmcnt(0)")
    for i in range(8):
        a(f"v_add_f32 v{32+i}, v{32+i}, v{40+i}")
        a(f"v_add_f32 v{48+i}, v{48+i}, v{56+i}")
    for i in range(8):
        a(f"v_add_f32 v{32+i}, v{32+i}, v{48+i}")
    a(f"""
    s_lshl_b32 s{S_T1}, s{S_R}, 5
    s_add_u32 s{S_T1}, s{S_T1}, s{S_T0}
    s_lshl_b32 s{S_T2}, s{S_T1}, 12
    s_add_u32 s{S_T2}, s{S_T2}, s34
    s_add_u32 s{S_T2}, s{S_T2}, {WS_AKV}
    buffer_store_dwordx4 v[32:35], v{VT}, s[{S_WSSRD}:{S_WSSRD+3}], s{S_T2} offen
    s_lshl_b32 s{S_T2}, s{S_T1}, 7
    s_lshr_b32 s35, s35, 4
    s_add_u32 s{S_T2}, s{S_T2}, s35
    s_add_u32 s{S_T2}, s{S_T2}, {WS_AZ}
    v_lshrrev_b32 v{VT+1}, 4, v{VLANE}
    v_lshlrev_b32 v{VT+1}, 4, v{VT+1}
    v_and_b32 v{VT+2}, 15, v{VLANE}
    v_cmp_eq_u32 vcc, 0, v{VT+2}
    s_and_saveexec_b64 s[36:37], vcc
    buffer_store_dwordx4 v[36:39], v{VT+1}, s[{S_WSSRD}:{S_WSSRD+3}], s{S_T2} offen
    s_mov_b64 exec, s[36:37]
    """)

def kernel_k1(name, opt={}):
    a = Asm()
    stamp = mk_stamp(a, opt)
    a.label(name)
    decode_wg(a)
    stamp(0)
    g1_setup(a, WS_END)
    a(f"s_cmp_eq_u32 s{S_P}, 1")
    a("s_cbranch_scc1 L_probB")
    g1_main(a, 0, opt, stamp)
    stamp(2)
    epi_A(a)
    a("s_branch L_fin")
    a.label("L_probB")
    g1_main(a, 1, opt, stamp)
    stamp(2)
    epi_B(a)
    a.label("L_fin")
    if opt.get("stamp"):
        a("s_waitcnt vmcnt(0)")
    stamp(3)
    stamp_flush(a, opt, 4)
    a.label("L_exit")
    a("s_endpgm")
    return a

if __name__ == "__main__":
    import sys
    opt = {}
    for x in sys.argv[2:]:
        if "=" in x:
            k, vv = x.split("="); opt[k] = int(vv)
        else:
            opt[x] = True
    a = kernel_k1("qkv_kernel", opt)
    assemble_file([("qkv_kernel", a, 256, 512, LDS_G1, 208)], sys.argv[1])
```

```python
from common import *
from k1b import cvt_pair

NEG_INF = 0xff800000

QF   = 96
CF   = 0
SS   = 16
PF   = 48
OO   = 64
LL   = 112
KV   = 128
CM   = 160
ONES = 176
NEGM = 180
VKV  = 184
AT   = 188

S_MLO = 40
S_J = 48; S_JA = 49; S_PASS = 50

def att_masks(a):
    T = AT
    a(f"""
    v_and_b32 v{T}, 15, v{VLANE}
    v_lshrrev_b32 v{T+1}, 4, v{VLANE}
    v_lshlrev_b32 v{T+1}, 2, v{T+1}
    """)
    for i in range(4):
        a(f"v_add_u32 v{T+2}, {i}, v{T+1}")
        a(f"v_cmp_le_u32 s[{S_MLO+2*i}:{S_MLO+2*i+1}], v{T+2}, v{T}")
    for i in range(4):
        a(f"v_mov_b32 v{ONES+i}, 0x3f803f80")

def mmc(d, A, B, C):
    return f"v_mfma_f32_16x16x32_bf16 v[{d}:{d+3}], v[{A}:{A+3}], v[{B}:{B+3}], v[{C}:{C+3}]"

def kv_reads(buf, off_imm=0, which=(0, 1, 2, 3)):
    return [f"ds_read_b128 v[{KV+buf*16+4*f}:{KV+buf*16+4*f+3}], v{VKV} offset:{off_imm + f*1024}" for f in which]

def kinds(j, st):
    if j == 0: return {0: ("U", "F"), 1: ("X", "U")}.get(st)
    if j == 1: return {0: ("F", "F"), 1: ("F", "F"), 2: ("U", "F"), 3: ("X", "U")}[st]
    if j == 8: return {0: ("L", "X"), 1: ("F", "L"), 2: ("F", "F"), 3: ("F", "F")}[st]
    if j == 9: return {2: ("L", "X"), 3: ("F", "L")}.get(st)
    return ("F", "F")

def att_pair(a, j, buf):
    K0 = KV + buf * 16
    act = [st for st in range(4) if kinds(j, st)]
    cm = {}
    n = 0
    for st in act:
        for t in range(2):
            kd = kinds(j, st)[t]
            if kd in ("U", "L"):
                d = CM + 4 * n; n += 1
                cm[(st, t)] = d
                for i in range(4):
                    m = f"s[{S_MLO+2*i}:{S_MLO+2*i+1}]"
                    if kd == "L":
                        a(f"v_cndmask_b32 v{d+i}, v{AT+8}, v{NEGM+st}, {m}")
                    else:
                        a(f"v_cndmask_b32 v{d+i}, v{NEGM+st}, v{AT+8}, {m}")
    for t in range(2):
        for st in act:
            kd = kinds(j, st)[t]
            if kd == "X": continue
            C = cm.get((st, t), CF + 4 * st)
            a(mmc(SS + (t * 4 + st) * 4, K0 + 4 * t, QF + 4 * st, C))
    for st in act:
        for t in range(2):
            kd = kinds(j, st)[t]
            S = SS + (t * 4 + st) * 4
            P = PF + 4 * st + 2 * t
            if kd == "X":
                a(f"v_mov_b32 v{P}, 0"); a(f"v_mov_b32 v{P+1}, 0")
            else:
                for i in range(4):
                    a(f"v_exp_f32 v{S+i}, v{S+i}")
                a(f"v_cvt_pk_bf16_f32 v{P}, v{S}, v{S+1}")
                a(f"v_cvt_pk_bf16_f32 v{P+1}, v{S+2}, v{S+3}")
    for u in range(2):
        for st in act:
            a(mm(OO + (u * 4 + st) * 4, K0 + 8 + 4 * u, PF + 4 * st))
    for st in act:
        a(mm(LL + 4 * st, ONES, PF + 4 * st))

def xlane_max(a, x, tmp):
    a(f"v_mov_b32 v{tmp}, v{x}")
    a(f"v_permlane32_swap_b32 v{x}, v{tmp}")
    a(f"v_max_f32 v{x}, v{x}, v{tmp}")
    a(f"v_mov_b32 v{tmp}, v{x}")
    a(f"v_permlane16_swap_b32 v{x}, v{tmp}")
    a(f"v_max_f32 v{x}, v{x}, v{tmp}")

def att_main_pass(a, tag):
    for st in range(4):
        for i in range(4):
            a(f"v_mov_b32 v{CF+4*st+i}, v{NEGM+st}")
    for i in range(32):
        a(f"v_mov_b32 v{OO+i}, 0")
    for i in range(16):
        a(f"v_mov_b32 v{LL+i}, 0")
    a(f"s_cmp_eq_u32 s{S_R}, 0")
    a(f"s_cbranch_scc1 L_{tag}_r0")
    for j in range(2):
        for l in kv_reads(0, j * 4096): a(l)
        a("s_waitcnt lgkmcnt(0)")
        att_pair(a, j, 0)
    a(f"s_mov_b32 s{S_J}, 2")
    a(f"s_branch L_{tag}_mid")
    a.label(f"L_{tag}_r0")
    a(f"s_lshl_b32 s{S_J}, s{S_SB}, 1")
    a(f"s_sub_u32 s{S_J}, 8, s{S_J}")
    a.label(f"L_{tag}_mid")
    a(f"s_lshl_b32 s{S_JA}, s{S_J}, 12")
    a(f"v_add_u32 v{AT+9}, s{S_JA}, v{VKV}")
    a(f"s_cmp_ge_u32 s{S_J}, 8")
    a(f"s_cbranch_scc1 L_{tag}_tail")
    a.label(f"L_{tag}_loop")
    for f in range(4):
        a(f"ds_read_b128 v[{KV+4*f}:{KV+4*f+3}], v{AT+9} offset:{f*1024}")
    a(f"v_add_u32 v{AT+9}, 4096, v{AT+9}")
    a("s_waitcnt lgkmcnt(0)")
    att_pair(a, 4, 0)
    a(f"s_add_u32 s{S_J}, s{S_J}, 1")
    a(f"s_cmp_lt_u32 s{S_J}, 8")
    a(f"s_cbranch_scc1 L_{tag}_loop")
    a.label(f"L_{tag}_tail")
    for j in (8, 9):
        for l in kv_reads(0, j * 4096): a(l)
        a("s_waitcnt lgkmcnt(0)")
        att_pair(a, j, 0)

def att_diag_max(a):
    for m in range(2):
        for f in range(2):
            d = KV + (2 * m + f) * 4
            a(f"ds_read_b128 v[{d}:{d+3}], v{VKV} offset:{(8+m)*4096 + f*1024}")
    for i in range(4):
        a(f"v_cndmask_b32 v{CM+i}, v{AT+8}, v{AT+10}, s[{S_MLO+2*i}:{S_MLO+2*i+1}]")
    a("s_waitcnt lgkmcnt(0)")
    for st in range(4):
        a(mmc(SS + 4 * st, KV + 4 * st, QF + 4 * st, CM))
    for st in range(4):
        S = SS + 4 * st
        a(f"v_max3_f32 v{NEGM+st}, v{S}, v{S+1}, v{S+2}")
        a(f"v_max_f32 v{NEGM+st}, v{NEGM+st}, v{S+3}")
    for st in range(4):
        xlane_max(a, NEGM + st, AT + 4 + (st & 1))
    for st in range(4):
        a(f"v_sub_f32 v{NEGM+st}, 0, v{NEGM+st}")

def att_true_max(a, tag):
    for st in range(4):
        a(f"v_mov_b32 v{NEGM+st}, v{AT+8}")
    for st in range(4):
        for i in range(4):
            a(f"v_mov_b32 v{CF+4*st+i}, 0")
    def one(j, addr_reg, imm):
        for f in range(2):
            a(f"ds_read_b128 v[{KV+4*f}:{KV+4*f+3}], v{addr_reg} offset:{imm + f*1024}")
        a("s_waitcnt lgkmcnt(0)")
        for st in range(4):
            kd = kinds(j, st)
            if not kd: continue
            for t in range(2):
                if kd[t] == "X": continue
                C = CF
                if kd[t] in "UL":
                    C = CM
                    for i in range(4):
                        m = f"s[{S_MLO+2*i}:{S_MLO+2*i+1}]"
                        if kd[t] == "L": a(f"v_cndmask_b32 v{CM+i}, v{AT+8}, v{AT+10}, {m}")
                        else: a(f"v_cndmask_b32 v{CM+i}, v{AT+10}, v{AT+8}, {m}")
                a(mmc(SS, KV + 4 * t, QF + 4 * st, C))
                a(f"v_max3_f32 v{NEGM+st}, v{NEGM+st}, v{SS}, v{SS+1}")
                a(f"v_max3_f32 v{NEGM+st}, v{NEGM+st}, v{SS+2}, v{SS+3}")
    a(f"s_cmp_eq_u32 s{S_R}, 0")
    a(f"s_cbranch_scc1 L_{tag}_r0")
    for j in range(2): one(j, VKV, j * 4096)
    a(f"s_mov_b32 s{S_J}, 2")
    a(f"s_branch L_{tag}_mid")
    a.label(f"L_{tag}_r0")
    a(f"s_lshl_b32 s{S_J}, s{S_SB}, 1")
    a(f"s_sub_u32 s{S_J}, 8, s{S_J}")
    a.label(f"L_{tag}_mid")
    a(f"s_lshl_b32 s{S_JA}, s{S_J}, 12")
    a(f"v_add_u32 v{AT+9}, s{S_JA}, v{VKV}")
    a(f"s_cmp_ge_u32 s{S_J}, 8")
    a(f"s_cbranch_scc1 L_{tag}_tail")
    a.label(f"L_{tag}_loop")
    one(4, AT + 9, 0)
    a(f"v_add_u32 v{AT+9}, 4096, v{AT+9}")
    a(f"s_add_u32 s{S_J}, s{S_J}, 1")
    a(f"s_cmp_lt_u32 s{S_J}, 8")
    a(f"s_cbranch_scc1 L_{tag}_loop")
    a.label(f"L_{tag}_tail")
    for j in (8, 9): one(j, VKV, j * 4096)
    for st in range(4):
        xlane_max(a, NEGM + st, AT + 4 + (st & 1))
    for st in range(4):
        a(f"v_sub_f32 v{NEGM+st}, 0, v{NEGM+st}")

def att_B(a, opt):
    att_masks(a)
    a(f"v_mov_b32 v{AT+8}, {NEG_INF:#x}")
    a(f"v_mov_b32 v{AT+10}, 0")
    a(f"s_mov_b32 s{S_PASS}, 0")
    att_diag_max(a)
    if opt.get("force_fallback"):
        for st in range(4):
            a(f"v_add_f32 v{NEGM+st}, 0x42c80000, v{NEGM+st}")
    a.label("L_att_pass")
    att_main_pass(a, "ap")
    a("s_nop 7")
    a(f"s_cmp_eq_u32 s{S_PASS}, 1")
    a("s_cbranch_scc1 L_att_done")
    a(f"s_mov_b32 s{S_T0}, {f2u(2.0**60):#x}")
    a(f"v_max3_f32 v{AT}, v{LL}, v{LL+4}, v{LL+8}")
    a(f"v_max_f32 v{AT}, v{AT}, v{LL+12}")
    a(f"v_add_f32 v{AT+1}, v{LL}, v{LL+4}")
    a(f"v_add_f32 v{AT+2}, v{LL+8}, v{LL+12}")
    a(f"v_add_f32 v{AT+1}, v{AT+1}, v{AT+2}")
    a(f"v_cmp_gt_f32 vcc, s{S_T0}, v{AT+1}")
    a(f"s_cmp_eq_u64 vcc, exec")
    a("s_cbranch_scc1 L_att_done")
    att_true_max(a, "tm")
    a(f"s_mov_b32 s{S_PASS}, 1")
    a("s_branch L_att_pass")
    a.label("L_att_done")
    for st in range(4):
        a(f"v_rcp_f32 v{AT+st}, v{LL+4*st}")
    for st in range(4):
        for u in range(2):
            for i in range(4):
                r = OO + (u * 4 + st) * 4 + i
                a(f"v_mul_f32 v{r}, v{AT+st}, v{r}")
    for st in range(4):
        cvt_pair(a, PF + 4 * st, OO + st * 4, OO + (4 + st) * 4)

def store_o(a, src):
    a(f"""
    s_lshl_b32 s{S_T0}, s{S_P}, 7
    s_lshl_b32 s{S_T1}, s{S_R}, 4
    s_add_u32 s{S_T0}, s{S_T0}, s{S_T1}
    s_lshl_b32 s{S_T1}, s{S_SB}, 2
    s_add_u32 s{S_T0}, s{S_T0}, s{S_T1}
    s_lshl_b32 s{S_T0}, s{S_T0}, 5
    s_lshl_b32 s{S_T1}, s{S_HP}, 1
    s_add_u32 s{S_T0}, s{S_T0}, s{S_T1}
    s_add_u32 s{S_T0}, s{S_T0}, s{S_H}
    s_lshl_b32 s{S_T0}, s{S_T0}, 10
    s_add_u32 s{S_T0}, s{S_T0}, {WS_O}
    v_lshlrev_b32 v{AT}, 4, v{VLANE}
    """)
    for st in range(4):
        a(f"buffer_store_dwordx4 v[{src+4*st}:{src+4*st+3}], v{AT}, s[{S_WSSRD}:{S_WSSRD+3}], s{S_T0} offen")
        if st < 3:
            a(f"s_add_u32 s{S_T0}, s{S_T0}, 32768")

def lin_A(a):
    KT = 128
    for u2 in range(2):
        cvt_pair(a, KT + 4 * u2, 4 * (0 + u2), 4 * (2 + u2))
    cvt_pair(a, KT + 8, 16, 20)
    Z = 24
    for i in range(4):
        a(f"v_mov_b32 v{Z+i}, 0")
    for u2 in range(2):
        for st in range(4):
            a(mmc(OO + (u2 * 4 + st) * 4, KT + 4 * u2, QF + 4 * st, Z))
    for st in range(4):
        a(mmc(LL + 4 * st, KT + 8, QF + 4 * st, Z))
    a(f"s_mov_b32 s{S_T0}, {f2u(1e-6):#x}")
    for st in range(4):
        a(f"v_add_f32 v{LL+4*st}, s{S_T0}, v{LL+4*st}")
    for st in range(4):
        a(f"v_rcp_f32 v{AT+st}, v{LL+4*st}")
    for st in range(4):
        for u in range(2):
            for i in range(4):
                r = OO + (u * 4 + st) * 4 + i
                a(f"v_mul_f32 v{r}, v{AT+st}, v{r}")
    for st in range(4):
        cvt_pair(a, PF + 4 * st, OO + st * 4, OO + (4 + st) * 4)

def kernel_k2(name, opt={}):
    a = Asm()
    stamp = mk_stamp(a, opt)
    a.label(name)
    decode_wg(a)
    stamp(0)
    a(f"""
    s_load_dwordx2 s[36:37], s[0:1], 64
    v_lshrrev_b32 v{AT}, 6, v0
    v_and_b32 v{VLANE}, 63, v0
    v_readfirstlane_b32 s{S_W}, v{AT}
    v_lshlrev_b32 v{AT+1}, 4, v{VLANE}
    s_lshr_b32 s{S_H}, s{S_W}, 2
    s_and_b32 s{S_SB}, s{S_W}, 3
    s_lshl_b32 s{S_T3}, s{S_HP}, 1
    s_add_u32 s{S_T3}, s{S_T3}, s{S_H}
    s_waitcnt lgkmcnt(0)
    s_mov_b32 s{S_WSSRD}, s36
    s_mov_b32 s{S_WSSRD+1}, s37
    s_mov_b32 s{S_WSSRD+2}, {WS_END}
    s_mov_b32 s{S_WSSRD+3}, 0x00020000
    """)
    a(f"""
    s_lshl_b32 s{S_T0}, s{S_T3}, 7
    s_lshl_b32 s{S_T1}, s{S_R}, 4
    s_add_u32 s{S_T0}, s{S_T0}, s{S_T1}
    s_lshl_b32 s{S_T1}, s{S_SB}, 2
    s_add_u32 s{S_T0}, s{S_T0}, s{S_T1}
    s_lshl_b32 s{S_T0}, s{S_T0}, 10
    s_cmp_eq_u32 s{S_P}, 1
    s_cbranch_scc1 L_probB
    s_add_u32 s{S_T0}, s{S_T0}, {WS_AQ}
    """)
    for st in range(4):
        a(f"buffer_load_dwordx4 v[{QF+4*st}:{QF+4*st+3}], v{AT+1}, s[{S_WSSRD}:{S_WSSRD+3}], s{S_T0} offen offset:{st*1024}")
    a(f"""
    s_lshl_b32 s{S_T0}, s{S_T3}, 12
    s_lshl_b32 s{S_T1}, s{S_SB}, 10
    s_add_u32 s{S_T0}, s{S_T0}, s{S_T1}
    s_add_u32 s{S_T0}, s{S_T0}, {WS_AKV}
    s_lshl_b32 s{S_T1}, s{S_T3}, 7
    s_and_b32 s{S_T2}, s{S_SB}, 1
    s_lshl_b32 s{S_T2}, s{S_T2}, 6
    s_add_u32 s{S_T1}, s{S_T1}, s{S_T2}
    s_add_u32 s{S_T1}, s{S_T1}, {WS_AZ}
    v_lshrrev_b32 v{AT+2}, 4, v{VLANE}
    v_lshlrev_b32 v{AT+2}, 4, v{AT+2}
    """)
    for rr in range(8):
        a(f"buffer_load_dwordx4 v[{32+rr*4}:{32+rr*4+3}], v{AT+1}, s[{S_WSSRD}:{S_WSSRD+3}], s{S_T0} offen")
        a(f"buffer_load_dwordx4 v[{64+rr*4}:{64+rr*4+3}], v{AT+2}, s[{S_WSSRD}:{S_WSSRD+3}], s{S_T1} offen")
        if rr < 7:
            a(f"s_add_u32 s{S_T0}, s{S_T0}, {32*4096}")
            a(f"s_add_u32 s{S_T1}, s{S_T1}, {32*128}")
    a("s_waitcnt vmcnt(0)")
    for base in (32, 64):
        for step in (16, 8, 4):
            for i in range(step):
                a(f"v_add_f32 v{base+i}, v{base+i}, v{base+step+i}")
    a(f"""
    s_mul_i32 s{S_T0}, s{S_H}, 6144
    s_lshl_b32 s{S_T1}, s{S_SB}, 10
    s_add_u32 s{S_T1}, s{S_T1}, s{S_T0}
    v_add_u32 v{AT+3}, s{S_T1}, v{AT+1}
    ds_write_b128 v{AT+3}, v[32:35]
    s_and_b32 s{S_T1}, s{S_SB}, 1
    s_lshl_b32 s{S_T1}, s{S_T1}, 10
    s_add_u32 s{S_T1}, s{S_T1}, s{S_T0}
    v_add_u32 v{AT+3}, s{S_T1}, v{AT+1}
    ds_write_b128 v{AT+3}, v[64:67] offset:4096
    s_waitcnt lgkmcnt(0)
    s_barrier
    v_add_u32 v{AT+3}, s{S_T0}, v{AT+1}
    """)
    for q in range(6):
        a(f"ds_read_b128 v[{4*q}:{4*q+3}], v{AT+3} offset:{q*1024}")
    a("s_waitcnt lgkmcnt(0)")
    lin_A(a)
    a("s_branch L_store")
    a.label("L_probB")
    a(f"s_add_u32 s{S_T0}, s{S_T0}, {WS_BQ}")
    for st in range(4):
        a(f"buffer_load_dwordx4 v[{QF+4*st}:{QF+4*st+3}], v{AT+1}, s[{S_WSSRD}:{S_WSSRD+3}], s{S_T0} offen offset:{st*1024}")
    a(f"""
    s_lshl_b32 s{S_T0}, s{S_T3}, 6
    s_lshl_b32 s{S_T1}, s{S_R}, 3
    s_add_u32 s{S_T0}, s{S_T0}, s{S_T1}
    s_lshl_b32 s{S_T1}, s{S_SB}, 2
    s_add_u32 s{S_T0}, s{S_T0}, s{S_T1}
    s_lshl_b32 s{S_T0}, s{S_T0}, 12
    s_sub_u32 s{S_T0}, s{S_T0}, {8*4096}
    s_lshl_b32 s{S_T1}, s{S_W}, 14
    s_cmp_lg_u32 s{S_R}, 0
    s_cbranch_scc1 L_ld
    s_cmp_lt_u32 s{S_SB}, 2
    s_cbranch_scc1 L_ldskip
    """)
    a.label("L_ld")
    for q in range(4):
        a(f"s_add_u32 m0, s{S_T1}, {q*4096}")
        for f in range(4):
            a(f"buffer_load_dwordx4 v{AT+1}, s[{S_WSSRD}:{S_WSSRD+3}], s{S_T0} offen offset:{f*1024} lds")
        a(f"s_add_u32 s{S_T0}, s{S_T0}, 4096")
    a.label("L_ldskip")
    a(f"""
    s_lshl_b32 s{S_T0}, s{S_H}, 16
    s_lshl_b32 s{S_T1}, s{S_SB}, 13
    s_add_u32 s{S_T0}, s{S_T0}, s{S_T1}
    v_add_u32 v{VKV}, s{S_T0}, v{AT+1}
    s_waitcnt vmcnt(0)
    s_barrier
    """)
    stamp(1)
    att_B(a, opt)
    a.label("L_store")
    stamp(2)
    store_o(a, PF)
    if opt.get("stamp"):
        a("s_waitcnt vmcnt(0)")
    stamp(3)
    stamp_flush(a, opt, 4)
    a.label("L_exit")
    a("s_endpgm")
    return a
```

```python
from common import *

O_ACC = 0
O_WF  = 32
O_OF  = 64
DEPTH = 8
O_VWA = 128
O_VO  = 132
O_T   = 136
S_OSO = 20; S_HH = 21
S_OUTSRD = 4; S_WOSRD = 8

def g3_wo_load(a):
    T = O_T
    a(f"""
    v_lshrrev_b32 v{T}, 3, v{VLANE}
    v_and_b32 v{T+1}, 7, v{VLANE}
    v_lshrrev_b32 v{T+2}, 5, v{VLANE}
    v_bfe_u32 v{T+3}, v{VLANE}, 4, 1
    v_lshl_or_b32 v{T+2}, v{T+2}, 1, v{T+3}
    v_lshlrev_b32 v{T+2}, 1, v{T+2}
    v_xor_b32 v{T+1}, v{T+1}, v{T+2}
    v_lshlrev_b32 v{T+1}, 4, v{T+1}
    v_lshl_add_u32 v{T}, v{T}, 11, v{T+1}
    s_lshl_b32 s{S_T0}, s{S_HP}, 7
    v_add_u32 v{T}, s{S_T0}, v{T}
    s_lshl_b32 s{S_T0}, s{S_W}, 18
    s_lshl_b32 s{S_T1}, s{S_W}, 14
    """)
    for j in range(1, 4):
        a(f"v_add_u32 v{T+j}, {j*(8*2048-1024)}, v{T}")
    for q in range(4):
        a(f"s_add_u32 m0, s{S_T1}, {q*4096}")
        for j in range(4):
            a(f"buffer_load_dwordx4 v{T+j}, s[{S_WOSRD}:{S_WOSRD+3}], s{S_T0} offen offset:{j*1024} lds")
        if q < 3:
            a(f"s_add_u32 s{S_T0}, s{S_T0}, {4*8*2048}")

def g3_addr(a):
    T = O_T + 4
    a(f"""
    v_lshrrev_b32 v{T}, 5, v{VLANE}
    v_lshlrev_b32 v{T}, 10, v{T}
    v_bfe_u32 v{T+1}, v{VLANE}, 4, 1
    v_lshl_add_u32 v{T}, v{T+1}, 9, v{T}
    v_bfe_u32 v{T+2}, v{VLANE}, 2, 2
    v_lshl_add_u32 v{T}, v{T+2}, 7, v{T}
    v_and_b32 v{T+3}, 3, v{VLANE}
    v_lshl_add_u32 v{T}, v{T+3}, 3, v{T}
    v_lshrrev_b32 v{T+2}, 1, v{T+2}
    v_lshl_or_b32 v{T+2}, v{T+1}, 1, v{T+2}
    """)
    for nt in range(4):
        a(f"v_xor_b32 v{T+3}, {nt}, v{T+2}")
        a(f"v_lshl_add_u32 v{O_VWA+nt}, v{T+3}, 5, v{T}")
    a(f"""
    s_lshl_b32 s{S_T0}, s{S_P}, 7
    s_lshl_b32 s{S_T1}, s{S_R}, 4
    s_add_u32 s{S_T0}, s{S_T0}, s{S_T1}
    s_lshl_b32 s{S_T1}, s{S_W}, 1
    s_add_u32 s{S_T0}, s{S_T0}, s{S_T1}
    s_lshl_b32 s{S_T0}, s{S_T0}, 15
    s_add_u32 s{S_OSO}, s{S_T0}, {WS_O}
    v_lshlrev_b32 v{O_VO}, 4, v{VLANE}
    v_add_u32 v{O_VO+1}, 32768, v{O_VO}
    """)
    for i in range(32):
        a(f"v_mov_b32 v{O_ACC+i}, 0")

def of(slot, t): return O_OF + (slot * 2 + t) * 4
def o_load(slot, himm, mod=""):
    return [f"buffer_load_dwordx4 v[{of(slot,t)}:{of(slot,t)+3}], v{O_VO+t}, s[{S_WSSRD}:{S_WSSRD+3}], s{S_OSO} offen offset:{himm}{mod}" for t in range(2)]
def w_reads(buf, hh):
    r = []
    for nt in range(4):
        d = O_WF + buf * 16 + nt * 4
        for aa in range(2):
            r.append(f"ds_read_b64_tr_b16 v[{d+2*aa}:{d+2*aa+1}], v{O_VWA+nt} offset:{hh*4096 + aa*2048}")
    return r

def g3_main(a, opt, mod=""):
    for hh in range(DEPTH):
        if hh and hh % 4 == 0:
            a(f"s_add_u32 s{S_OSO}, s{S_OSO}, 4096")
        for l in o_load(hh, (hh % 4) * 1024, mod): a(l)
    for l in w_reads(0, 0): a(l)
    a(f"s_mov_b32 s{S_HH}, 0")
    a.label("L_g3")
    for hl in range(8):
        buf = hl & 1
        a(f"s_waitcnt vmcnt({2*(DEPTH-1)}) lgkmcnt(0)")
        fill = []
        if hl < 7:
            fill += w_reads(buf ^ 1, hl + 1)
        else:
            fill += [f"v_add_u32 v{O_VWA+nt}, 32768, v{O_VWA+nt}" for nt in range(4)]
            fill += w_reads(buf ^ 1, 0)
        mf = []
        for nt in range(4):
            for t in range(2):
                mf.append(mm(O_ACC + (t * 4 + nt) * 4, O_WF + buf * 16 + nt * 4, of(hl, t)))
        interleave(mf, fill, a, per=2)
        if hl % 4 == 0:
            a(f"s_add_u32 s{S_OSO}, s{S_OSO}, 4096")
        for l in o_load(hl, (hl % 4) * 1024, mod): a(l)
    a(f"s_add_u32 s{S_HH}, s{S_HH}, 1")
    a(f"s_cmp_lt_u32 s{S_HH}, 4")
    a("s_cbranch_scc1 L_g3")
    a("s_waitcnt vmcnt(0) lgkmcnt(0)")

def g3_store(a):
    T = O_T
    P = O_WF
    for t in range(2):
        for nt in range(4):
            s_ = O_ACC + (t * 4 + nt) * 4
            d = P + (t * 4 + nt) * 2
            a(f"v_cvt_pk_bf16_f32 v{d}, v{s_}, v{s_+1}")
            a(f"v_cvt_pk_bf16_f32 v{d+1}, v{s_+2}, v{s_+3}")
    for t in range(2):
        for pr in range(2):
            d = P + (t * 4 + 2 * pr) * 2
            a(f"v_permlane16_swap_b32 v{d}, v{d+2}")
            a(f"v_permlane16_swap_b32 v{d+1}, v{d+3}")
    a(f"""
    v_and_b32 v{T}, 15, v{VLANE}
    v_lshlrev_b32 v{T}, 12, v{T}
    v_bfe_u32 v{T+1}, v{VLANE}, 4, 1
    v_lshl_add_u32 v{T}, v{T+1}, 5, v{T}
    v_lshrrev_b32 v{T+1}, 5, v{VLANE}
    v_lshl_add_u32 v{T}, v{T+1}, 4, v{T}
    s_lshl_b32 s{S_T0}, s{S_R}, 8
    s_lshl_b32 s{S_T1}, s{S_W}, 5
    s_add_u32 s{S_T0}, s{S_T0}, s{S_T1}
    s_lshl_b32 s{S_T0}, s{S_T0}, 12
    s_lshl_b32 s{S_T1}, s{S_P}, 11
    s_add_u32 s{S_T0}, s{S_T0}, s{S_T1}
    s_lshl_b32 s{S_T1}, s{S_HP}, 7
    s_add_u32 s{S_T0}, s{S_T0}, s{S_T1}
    """)
    for t in range(2):
        for pr in range(2):
            d = P + (t * 4 + 2 * pr) * 2
            a(f"buffer_store_dwordx4 v[{d}:{d+3}], v{T}, s[{S_OUTSRD}:{S_OUTSRD+3}], s{S_T0} offen offset:{pr*64}")
        if t == 0:
            a(f"s_add_u32 s{S_T0}, s{S_T0}, {16*4096}")

def kernel_k3(name, opt={}):
    a = Asm()
    stamp = mk_stamp(a, opt)
    a.label(name)
    decode_wg(a)
    stamp(0)
    a(f"""
    s_mul_i32 s{S_T0}, s{S_P}, 24
    s_add_u32 s34, s0, s{S_T0}
    s_addc_u32 s35, s1, 0
    s_load_dwordx2 s[38:39], s[34:35], 16
    s_load_dwordx2 s[36:37], s[0:1], 64
    s_load_dwordx2 s[40:41], s[0:1], 48
    v_lshrrev_b32 v{O_T}, 6, v0
    v_and_b32 v{VLANE}, 63, v0
    v_readfirstlane_b32 s{S_W}, v{O_T}
    s_waitcnt lgkmcnt(0)
    s_mov_b32 s{S_WSSRD}, s36
    s_mov_b32 s{S_WSSRD+1}, s37
    s_mov_b32 s{S_WSSRD+2}, {WS_END}
    s_mov_b32 s{S_WSSRD+3}, 0x00020000
    s_mov_b32 s{S_WOSRD}, s38
    s_mov_b32 s{S_WOSRD+1}, s39
    s_mov_b32 s{S_WOSRD+2}, {1024*1024*2}
    s_mov_b32 s{S_WOSRD+3}, 0x00020000
    s_mov_b32 s{S_OUTSRD}, s40
    s_mov_b32 s{S_OUTSRD+1}, s41
    s_mov_b32 s{S_OUTSRD+2}, {2048*2048*2}
    s_mov_b32 s{S_OUTSRD+3}, 0x00020000
    """)
    g3_wo_load(a)
    g3_addr(a)
    a("s_waitcnt vmcnt(0)")
    a("s_barrier")
    stamp(1)
    g3_main(a, opt)
    stamp(2)
    g3_store(a)
    if opt.get("stamp"):
        a("s_waitcnt vmcnt(0)")
    stamp(3)
    stamp_flush(a, opt, 4)
    a.label("L_exit")
    a("s_endpgm")
    return a
```

```python
import sys
from common import *
from k1b import kernel_k1
from k2 import kernel_k2
from k3 import kernel_k3
opt = {}
for x in sys.argv[2:]:
    if "=" in x:
        k, vv = x.split("="); opt[k] = int(vv)
    else:
        opt[x] = True
hdr = open("concat_heads__linear_attn_block__sliding_block__prompt.s.ref").read().split("; Override launch")[0]
ks = [("qkv_kernel", kernel_k1("qkv_kernel", opt), 256, 512, LDS_G1, 208),
      ("att_kernel", kernel_k2("att_kernel", opt), 256, 512, 131072, 208),
      ("out_kernel", kernel_k3("out_kernel", opt), 256, 512, 131072, 208)]
assemble_file(ks, sys.argv[1], hdr)
```
